```python
import torch

def _softmax(x, axis=-1):
    return torch.softmax(x, dim=axis)
def _gelu(x):
    return torch.nn.functional.gelu(x, approximate="tanh")
def _silu(x):
    return torch.nn.functional.silu(x)
def _sigmoid(x):
    return torch.sigmoid(x)
def _layernorm(x, axis=-1, eps=1e-5):
    m = x.mean(dim=axis, keepdim=True)
    v = x.var(dim=axis, keepdim=True, unbiased=False)
    return (x - m) / torch.sqrt(v + eps)
def _scatter_add(tgt, idx, src, axis=0):
    return tgt.clone().index_add_(axis, idx, src)
def _segment_sum(src, seg, n):
    out = torch.zeros((n,) + src.shape[1:], dtype=src.dtype)
    return out.index_add_(0, seg, src)
def _pad(x, pw):
    flat = tuple(v for pair in reversed(pw) for v in pair)
    return torch.nn.functional.pad(x, flat)

kernel_name = 'recurrent_scan__mha_block_cached__dense_activation_squared_relu__decode'

def setup_inputs():

    _w = (lambda a: (lambda t: t.to(torch.bfloat16) if t.is_floating_point() else t)(torch.as_tensor(a)))
    def _A_setup():
        B, Sq, D = 8, 1, 640
        H, Sk, Dh = 32, 4096, 192
        return {
            "x": _w((lambda *s: torch.randn(*s, dtype=torch.bfloat16) * 0.05)(B, Sq, D)),
            "k_cache": _w((lambda *s: torch.randn(*s, dtype=torch.bfloat16) * 0.8)(B, H, Sk, Dh)),
            "v_cache": _w((lambda *s: torch.randn(*s, dtype=torch.bfloat16) * 0.2)(B, H, Sk, Dh)),
            "wq": _w((lambda *s: torch.randn(*s, dtype=torch.bfloat16) * 0.8)(D, H * Dh) * (D ** -0.5)),
            "wo": _w((lambda *s: torch.randn(*s, dtype=torch.bfloat16) * 0.2)(H * Dh, D) * ((H * Dh) ** -0.5)),
        }
    _A_in = _A_setup()

    def _B_setup():
        B, S, D, F = 8, 1, 640, 1536
        return {
            "x": _w((lambda *s: torch.randn(*s, dtype=torch.bfloat16) * 0.05)(B, S, D)),
            "w1": _w((lambda *s: torch.randn(*s, dtype=torch.bfloat16) * 0.1)(D, F)),
            "b1": _w((lambda *s: torch.randn(*s, dtype=torch.bfloat16) * 0.1)(F)),
            "w2": _w((lambda *s: torch.randn(*s, dtype=torch.bfloat16) * 0.1)(F, D)),
            "b2": _w((lambda *s: torch.randn(*s, dtype=torch.bfloat16) * 0.1)(D)),
        }
    _B_in = _B_setup()

    return {
        "A_x": _A_in["x"],
        "A_k_cache": _A_in["k_cache"],
        "A_v_cache": _A_in["v_cache"],
        "A_wq": _A_in["wq"],
        "A_wo": _A_in["wo"],
        "B_x": _B_in["x"],
        "B_w1": _B_in["w1"],
        "B_b1": _B_in["b1"],
        "B_w2": _B_in["w2"],
        "B_b2": _B_in["b2"],
    }

def reference(A_x, A_k_cache, A_v_cache, A_wq, A_wo, B_x, B_w1, B_b1, B_w2, B_b2):
    def _A_ref(x, k_cache, v_cache, wq, wo):
        B, Sq, D = x.shape
        H, Dh = 32, 192
        q = (lambda x, *d: x.permute(*d))((x @ wq).reshape(B, Sq, H, Dh), 0, 2, 1, 3)
        scores = torch.einsum("bhqd,bhkd->bhqk", q, k_cache) * (Dh ** -0.5)
        p = _softmax(scores, axis=-1)
        o = torch.einsum("bhqk,bhkd->bhqd", p, v_cache)
        return (lambda x, *d: x.permute(*d))(o, 0, 2, 1, 3).reshape(B, Sq, H * Dh) @ wo

    def _B_ref(x, w1, b1, w2, b2):
        h = torch.einsum("bsd,df->bsf", x, w1) + b1
        zero = torch.zeros_like(h)
        r = torch.where(h > zero, h, zero)
        h = r * r
        out = torch.einsum("bsf,fd->bsd", h, w2) + b2
        return out

    x = A_x
    xn = _layernorm(x, axis=-1)
    s = _A_ref(xn, A_k_cache, A_v_cache, A_wq, A_wo)
    g = _silu(_B_ref(xn, B_w1, B_b1, B_w2, B_b2))
    return x + s * g
```

```python
import re

TRANS = ("v_exp_f32", "v_log_f32", "v_rcp_f32", "v_rsq_f32", "v_sqrt_f32", "v_sin_f32", "v_cos_f32", "v_rcp_iflag_f32")

def split_ops(s):
    out = []; depth = 0; cur = ""
    for ch in s:
        if ch == '[': depth += 1
        if ch == ']': depth -= 1
        if ch == ',' and depth == 0:
            out.append(cur.strip()); cur = ""
        else:
            cur += ch
    if cur.strip(): out.append(cur.strip())
    return out

REG = re.compile(r'^-?(?:abs\()?\|?([vsa])(\d+)\)?\|?$')
RNG = re.compile(r'^-?([vsa])\[(\d+):(\d+)\]$')
def regs_of(op):
    op = op.strip()
    tok = op.split()[0] if op else ""
    m = REG.match(tok)
    if m: return {(m.group(1), int(m.group(2)))}
    m = RNG.match(tok)
    if m: return {(m.group(1), i) for i in range(int(m.group(2)), int(m.group(3))+1)}
    if tok in ("vcc", "-vcc"): return {("s", "vcc_lo"), ("s", "vcc_hi")}
    if tok == "vcc_lo": return {("s", "vcc_lo")}
    if tok == "vcc_hi": return {("s", "vcc_hi")}
    if tok == "exec": return {("s", "exec_lo"), ("s", "exec_hi")}
    if tok == "m0": return {("s", "m0")}
    return set()

class Ins:
    def __init__(self, text):
        self.text = text
        t = text.split(";")[0].strip()
        self.label = None; self.op = None; self.ops = []
        if not t: self.kind = "blank"; return
        if t.endswith(":"):
            self.kind = "label"; self.label = t[:-1]; return
        if t.startswith("."):
            self.kind = "dir"; return
        self.kind = "ins"
        parts = t.split(None, 1)
        self.op = parts[0]
        rest = parts[1] if len(parts) > 1 else ""
        self.ops = split_ops(rest)
        self.full = t
        op = self.op
        base = re.sub(r'_(e32|e64|dpp|sdwa)$', '', op)
        self.base = base
        self.valu = op.startswith("v_") and not op.startswith("v_nop")
        self.dpp = op.endswith("_dpp") or any(k in t for k in ("quad_perm", "row_ror", "row_shr", "row_shl", "row_mirror", "row_half_mirror", "row_bcast", "row_newbcast"))
        self.vmem = op.startswith(("buffer_", "global_", "flat_"))
        self.ds = op.startswith("ds_")
        self.trans = base in TRANS
        self.dot = base.startswith("v_dot")
        self.permlane = base.startswith("v_permlane")
        self.w = set(); self.r = set()
        ops = self.ops
        if self.valu:
            if base.startswith("v_permlane") and "swap" in base:
                self.w = regs_of(ops[0]) | regs_of(ops[1]); self.r = set(self.w)
            else:
                self.w = regs_of(ops[0])
                srcs = ops[1:]
                if base in ("v_add_co_u32", "v_sub_co_u32", "v_addc_co_u32", "v_subb_co_u32", "v_div_scale_f32", "v_mad_u64_u32"):
                    self.w |= regs_of(ops[1]); srcs = ops[2:]
                for o in srcs: self.r |= regs_of(o)
                if base in ("v_dot2c_f32_bf16", "v_fmac_f32", "v_pk_fmac_f32", "v_writelane_b32"):
                    self.r |= regs_of(ops[0])
                if base == "v_cndmask_b32" and len(ops) == 3:
                    self.r |= regs_of("vcc")
                if base.startswith("v_cmpx"):
                    self.w |= regs_of("exec")
        elif self.vmem:
            isload = "load" in op
            isatomic = "atomic" in op
            lds = " lds" in t
            if op.startswith("buffer_"):
                if op.startswith(("buffer_inv", "buffer_wbl2")):
                    pass
                elif lds:
                    for o in ops: self.r |= regs_of(o)
                elif isload:
                    self.w = regs_of(ops[0])
                    for o in ops[1:]: self.r |= regs_of(o)
                else:
                    for o in ops: self.r |= regs_of(o)
                    if isatomic and " sc0" in t: self.w = regs_of(ops[0])
                    self.store_data = regs_of(ops[0])
            else:
                raise Exception("global ops not modelled: " + t)
        elif self.ds:
            if op.startswith(("ds_read", "ds_bpermute", "ds_permute", "ds_swizzle")) or "_rtn" in op:
                self.w = regs_of(ops[0])
                for o in ops[1:]: self.r |= regs_of(o)
            else:
                for o in ops: self.r |= regs_of(o)
        else:
            if op.startswith(("s_cmp", "s_cbranch", "s_branch", "s_waitcnt", "s_nop", "s_barrier", "s_endpgm", "s_sleep", "s_setprio")):
                for o in ops: self.r |= regs_of(o)
            else:
                if ops: self.w = regs_of(ops[0])
                for o in ops[1:]: self.r |= regs_of(o)
    def states(self):
        if self.kind != "ins": return 0
        if self.op == "s_nop": return int(self.ops[0], 0) + 1
        return 1

def vregs(s): return {x for x in s if x[0] in "va"}
def sregs(s): return {x for x in s if x[0] == "s"}

def required(prod, cons):
    need = 0
    if prod.kind != "ins" or cons.kind != "ins": return 0
    pw_v = vregs(prod.w); pw_s = sregs(prod.w)
    if prod.valu:
        if cons.valu and cons.dpp and (pw_v & vregs(cons.r)): need = max(need, 2)
        if cons.valu and cons.permlane and (pw_v & vregs(cons.r)): need = max(need, 2)
        if cons.valu and cons.base in ("v_readlane_b32", "v_readfirstlane_b32") and (pw_v & vregs(cons.r)): need = max(need, 1)
        if pw_s:
            if cons.valu and (pw_s & sregs(cons.r)):
                if cons.base in ("v_readlane_b32", "v_writelane_b32"): need = max(need, 4)
                else: need = max(need, 2)
            if cons.vmem and (pw_s & sregs(cons.r)): need = max(need, 5)
            if (not cons.valu) and (not cons.vmem) and (not cons.ds) and (pw_s & sregs(cons.r)): need = max(need, 1)
            if cons.op in ("s_cbranch_vccz", "s_cbranch_vccnz") and (("s", "vcc_lo") in pw_s): need = max(need, 1)
            if ("s", "exec_lo") in pw_s and cons.valu: need = max(need, 5 if cons.dpp else 4 if (cons.permlane or cons.base.startswith("v_read")) else 0)
        if prod.trans and cons.valu and not cons.trans and (pw_v & vregs(cons.r)): need = max(need, 1)
        if prod.dot:
            if cons.valu and ((pw_v & vregs(cons.r)) or (pw_v & vregs(cons.w))):
                if cons.base == prod.base:
                    ab = set()
                    for o in cons.ops[1:3]: ab |= regs_of(o)
                    if pw_v & vregs(ab): need = max(need, 3)
                else:
                    need = max(need, 3)
            if (cons.vmem or cons.ds) and (pw_v & vregs(cons.r)): need = max(need, 3)
    if prod.vmem and hasattr(prod, "store_data") and ("x4" in prod.op or "x3" in prod.op or "cmpswap" in prod.op):
        if cons.kind == "ins" and (prod.store_data & vregs(cons.w)):
            need = max(need, 2 if cons.valu else 1)
    if prod.ds and prod.op in ("ds_write_b128", "ds_write_b96", "ds_write_b64"):
        pass
    if (not prod.valu) and ("s", "m0") in prod.w and cons.vmem and " lds" in cons.full: need = max(need, 1)
    return need

MAXD = 5
def fix(lines):
    ins = [Ins(l) for l in lines]
    total = 0
    def maps():
        labels = {x.label: i for i, x in enumerate(ins) if x.kind == "label"}
        branch_to = {}
        for i, x in enumerate(ins):
            if x.kind == "ins" and (x.op.startswith("s_cbranch") or x.op == "s_branch"):
                if x.ops[0] in labels: branch_to.setdefault(labels[x.ops[0]], []).append(i)
        return branch_to
    changed = True
    while changed:
        changed = False
        branch_to = maps()
        def preds(i):
            out = []
            if i > 0:
                p = ins[i-1]
                if not (p.kind == "ins" and p.op in ("s_branch", "s_endpgm")):
                    out.append(i-1)
            if ins[i].kind == "label":
                out += branch_to.get(i, [])
            return out
        i = 0
        while i < len(ins):
            c = ins[i]
            if c.kind != "ins":
                i += 1; continue
            worst = 0
            stack = [(p, 0) for p in preds(i)]
            seen = set()
            while stack:
                p, dist = stack.pop()
                if (p, dist) in seen: continue
                seen.add((p, dist))
                x = ins[p]
                need = required(x, c)
                if need > dist: worst = max(worst, need - dist)
                nd = dist + x.states()
                if nd < MAXD:
                    for q in preds(p): stack.append((q, nd))
            if worst > 0:
                ins.insert(i, Ins(f"    s_nop {worst-1}"))
                total += 1
                changed = True
                branch_to = maps()
                i += 1
            i += 1
    return [x.text for x in ins], total
```

```python
import sys, math, struct
from hazard import fix

NAME = "recurrent_scan__mha_block_cached__dense_activation_squared_relu__decode"
TB = 4096*384
def f2u(x): return struct.unpack("<I", struct.pack("<f", x))[0]
CSC = (192.0 ** -0.5) * math.log2(math.e)

XN = 0
QB = 1280
ML = 1664
R2 = 1728
SS = 2048
QP = 5120
OP = QP
LDS_BYTES = QP + 32*768

V_TID, V_LANE = 0, 1
V_KV = 12
Q0 = 16
ACC = 28
VM, VL, VMC, VS, VT, VPL, VPH = 52, 53, 54, 55, 56, 57, 58
A0 = 64
B0 = 184
S_B, S_H = 30, 31
SRD_K, SRD_V, SRD_0, SRD_1, SRD_DBG, SRD_WS = 32, 36, 40, 44, 48, 52
S_BASE, S_KG, S_VG, S_T0, S_T1, S_T2, S_SOFF, S_CNT, S_C = 56, 57, 58, 59, 60, 61, 62, 65, 64
S_R = 66
PTR = dict(x=4, k=6, v=8, wq=10, wo=12, bx=14, w1=16, b1=18, w2=20, b2=22, out=24, dbg=26, ws=28)
SIZE = dict(x=10240, k=256*TB, v=256*TB, wq=640*6144*2, wo=6144*640*2, w1=640*1536*2, b1=3072, w2=1536*640*2, b2=1280, out=10240, dbg=256, ws=1610612736)

class G:
    def __init__(self, **kw):
        self.L = []
        self.Q = []
        self.uid = 0
        self.retired = set()
        self.p = dict(P=3, N=2, c=2, sk=16, rot=37, kfl="nt", wfl="", dbg=0)
        self.p.update(kw)
    def a(self, s): self.L.append("    " + s)
    def lab(self, s): self.L.append(s + ":")
    def cmt(self, s): self.L.append("    ; " + s)
    def new(self, s):
        self.uid += 1
        return f"L_{s}_{self.uid}"
    def vm(self, text, tag):
        self.a(text); self.Q.append(tag)
    def wait(self, tag):
        if tag not in self.Q:
            assert tag in self.retired, tag
            return
        idx = max(i for i, t in enumerate(self.Q) if t == tag)
        self.retired |= set(self.Q[:idx+1])
        n = len(self.Q) - 1 - idx
        assert n <= 63, n
        self.a(f"s_waitcnt vmcnt({n})")
        self.Q = self.Q[idx+1:]
    def wait_all(self):
        self.a("s_waitcnt vmcnt(0)"); self.Q = []
    def srd(self, dst, name, size=None):
        p = PTR[name]
        self.a(f"s_mov_b32 s{dst}, s{p}")
        self.a(f"s_and_b32 s{dst+1}, s{p+1}, 0xffff")
        self.a(f"s_mov_b32 s{dst+2}, {size if size is not None else SIZE[name]}")
        self.a(f"s_mov_b32 s{dst+3}, 0x20000")
    def S(self, r): return f"s[{r}:{r+3}]"
    def V4(self, r): return f"v[{r}:{r+3}]"

    def dpp(self, op, dst, src, ctl):
        self.a(f"{op}_dpp v{dst}, v{src}, v{src} {ctl} row_mask:0xf bank_mask:0xf")
    def rows_combine(self, op, v, tmp):
        a = self.a
        for i in range(4): a(f"v_readlane_b32 s{S_R+i}, v{v}, {16*i}")
        a(f"v_mov_b32 v{tmp}, s{S_R}")
        a(f"{op} v{tmp}, s{S_R+1}, v{tmp}")
        a(f"{op} v{tmp}, s{S_R+2}, v{tmp}")
        a(f"{op} v{v}, s{S_R+3}, v{tmp}")
    def allreduce64(self, v, tmp):
        for r in (8, 4, 2, 1): self.dpp("v_add_f32", v, v, f"row_ror:{r}")
        self.rows_combine("v_add_f32", v, tmp)
    def bf16r(self, dst, src):
        self.a(f"v_cvt_pk_bf16_f32 v{dst}, 0, v{src}")

    def prologue_common(self):
        a = self.a
        a("s_cmp_ge_u32 s2, 256")
        a("s_cbranch_scc1 L_end")
        a("s_load_dwordx16 s[4:19], s[0:1], 0")
        a("s_load_dwordx8 s[20:27], s[0:1], 64")
        a("s_load_dwordx2 s[28:29], s[0:1], 96")
        a(f"v_lshrrev_b32 v2, 6, v0")
        a(f"v_and_b32 v{V_LANE}, 63, v0")
        a("v_readfirstlane_b32 s3, v2")
        a(f"s_lshr_b32 s{S_B}, s2, 5")
        a(f"s_and_b32 s{S_H}, s2, 31")
        a(f"s_mov_b32 s{S_C}, {hex(f2u(CSC))}")
        a(f"v_lshrrev_b32 v3, 3, v{V_LANE}")
        a(f"v_and_b32 v4, 7, v{V_LANE}")
        a("s_mul_i32 s59, s3, 80")
        a("v_mul_u32_u24 v5, 10, v3")
        a("v_add_u32 v5, s59, v5")
        a("v_mul_u32_u24 v5, 12288, v5")
        a("v_lshlrev_b32 v6, 4, v4")
        a("v_add_u32 v5, v5, v6")
        a(f"v_lshlrev_b32 v7, 2, v{V_LANE}")
        c, sk = self.p['c'], self.p['sk']
        a(f"v_and_b32 v8, {c-1}, v3")
        a(f"v_lshrrev_b32 v9, {c.bit_length()-1}, v3")
        a(f"v_mul_u32_u24 v9, {sk}, v9")
        a("v_add_u32 v9, v9, v8")
        a("v_mul_u32_u24 v9, 384, v9")
        a(f"v_add_u32 v{V_KV}, v9, v6")
        a("s_waitcnt lgkmcnt(0)")
        self.srd(SRD_0, 'x')
        self.srd(SRD_1, 'wq')
        a(f"s_mul_i32 s59, s{S_B}, 1280")
        for j in range(5):
            self.vm(f"buffer_load_dword v{52+j}, v7, {self.S(SRD_0)}, s59 offen offset:{256*j}", "x")
        a(f"s_mul_i32 s60, s{S_H}, 384")
        for i in range(10):
            for m in range(3):
                r = A0 + 4*(3*i+m)
                self.vm(f"buffer_load_dwordx4 {self.V4(r)}, v5, {self.S(SRD_1)}, s60 offen offset:{128*m} {self.p['wfl']}", f"wq{i}")
            if i < 9: a("s_add_u32 s60, s60, 12288")
        self.srd(SRD_DBG, 'dbg')
        self.srd(SRD_WS, 'ws')

    def layernorm_qproj(self):
        a = self.a
        XR = 52; XF = 16
        self.wait("x")
        for j in range(5):
            a(f"v_lshlrev_b32 v{XF+2*j}, 16, v{XR+j}")
            a(f"v_and_b32 v{XF+2*j+1}, 0xffff0000, v{XR+j}")
        a(f"v_add_f32 v57, v{XF}, v{XF+1}")
        for j in range(2, 10): a(f"v_add_f32 v57, v57, v{XF+j}")
        self.allreduce64(57, 58)
        a(f"v_mul_f32 v57, {hex(f2u(1.0/640))}, v57")
        a(f"v_sub_f32 v59, v{XF}, v57")
        a(f"v_mul_f32 v58, v59, v59")
        for j in range(1, 10):
            a(f"v_sub_f32 v59, v{XF+j}, v57")
            a(f"v_fmac_f32 v58, v59, v59")
        self.allreduce64(58, 59)
        a(f"v_mul_f32 v58, {hex(f2u(1.0/640))}, v58")
        self.bf16r(57, 57)
        self.bf16r(58, 58)
        a(f"v_add_f32 v58, {hex(f2u(1e-5))}, v58")
        self.bf16r(58, 58)
        a("v_sqrt_f32 v58, v58")
        self.bf16r(58, 58)
        a("v_rcp_f32 v59, v58")
        for j in range(10):
            a(f"v_sub_f32 v{XF+j}, v{XF+j}, v57")
            self.bf16r(XF+j, XF+j)
        for j in range(10):
            a(f"v_mul_f32 v60, v{XF+j}, v59")
            a(f"v_fma_f32 v61, -v60, v58, v{XF+j}")
            a(f"v_fma_f32 v{XF+j}, v61, v59, v60")
        for j in range(5):
            a(f"v_cvt_pk_bf16_f32 v{XR+j}, v{XF+2*j}, v{XF+2*j+1}")
        for j in range(5):
            a(f"ds_write_b32 v7, v{XR+j} offset:{XN+256*j}")
        a("s_mul_i32 s59, s3, 160")
        a("v_mul_u32_u24 v8, 20, v3")
        a("v_add_u32 v8, s59, v8")
        a("s_waitcnt lgkmcnt(0)")
        for j in range(5):
            a(f"ds_read_b32 v{XR+j}, v8 offset:{XN+4*j}")
        for k in range(24): a(f"v_mov_b32 v{ACC+k}, 0")
        a("s_waitcnt lgkmcnt(0)")
        for i in range(10):
            X = XR + i//2
            if i % 2 == 0:
                a(f"v_and_b32 v57, 0xffff, v{X}")
                a(f"v_lshlrev_b32 v58, 16, v{X}")
            else:
                a(f"v_lshrrev_b32 v57, 16, v{X}")
                a(f"v_and_b32 v58, 0xffff0000, v{X}")
            self.wait(f"wq{i}")
            for m in range(3):
                r = A0 + 4*(3*i+m)
                for dw in range(4):
                    a(f"v_dot2c_f32_bf16 v{ACC+8*m+2*dw}, v{r+dw}, v57")
                    a(f"v_dot2c_f32_bf16 v{ACC+8*m+2*dw+1}, v{r+dw}, v58")
        for k in range(24): self.dpp("v_add_f32", ACC+k, ACC+k, "row_ror:8")
        a(f"v_lshrrev_b32 v8, 4, v{V_LANE}")
        a("s_lshl_b32 s59, s3, 2")
        a("v_add_u32 v8, s59, v8")
        a("v_mul_u32_u24 v8, 768, v8")
        a("v_lshlrev_b32 v9, 5, v4")
        a("v_add_u32 v8, v8, v9")
        a("s_mov_b32 exec_lo, 0x00ff00ff"); a("s_mov_b32 exec_hi, 0x00ff00ff")
        for m in range(3):
            for hh in range(2):
                r = ACC + 8*m + 4*hh
                a(f"ds_write_b128 v8, {self.V4(r)} offset:{QP + 256*m + 16*hh}")
        a("s_mov_b64 exec, -1")
        a("s_waitcnt lgkmcnt(0)")
        a("s_barrier")

    def q_stage_a(self):
        a = self.a
        skip = self.new("noqa")
        a("s_cmp_ge_u32 s3, 3")
        a(f"s_cbranch_scc1 {skip}")
        a("v_lshlrev_b32 v8, 2, v0")
        for half in range(2):
            for r in range(16):
                a(f"ds_read_b32 v{ACC+r}, v8 offset:{QP + 768*(16*half+r)}")
            a("s_waitcnt lgkmcnt(0)")
            if half == 0:
                a(f"v_add_f32 v57, v{ACC}, v{ACC+1}")
                for r in range(2, 16): a(f"v_add_f32 v57, v57, v{ACC+r}")
            else:
                for r in range(16): a(f"v_add_f32 v57, v57, v{ACC+r}")
        a("v_cvt_pk_bf16_f32 v57, v57, v57")
        a("v_lshlrev_b32 v8, 1, v0")
        a(f"ds_write_b16 v8, v57 offset:{QB}")
        a("s_waitcnt lgkmcnt(0)")
        self.lab(skip)

    def issue_group(self, g, buf):
        a = self.a; p = self.p
        c, sk = p['c'], p['sk']; per = sk//c; lp = per.bit_length()-1; np_ = 8//c
        isv = g % 2
        sg = S_VG if isv else S_KG
        srd = SRD_V if isv else SRD_K
        a(f"s_and_b32 s{sg}, s{sg}, 511")
        if per > 1:
            a(f"s_lshr_b32 s{S_T0}, s{sg}, {lp}")
            a(f"s_and_b32 s{S_T1}, s{sg}, {per-1}")
            a(f"s_mul_i32 s{S_T0}, s{S_T0}, {np_*sk*384}")
            a(f"s_mul_i32 s{S_T1}, s{S_T1}, {c*384}")
            a(f"s_add_u32 s{S_T0}, s{S_T0}, s{S_T1}")
        else:
            a(f"s_mul_i32 s{S_T0}, s{sg}, {8*384}")
        a(f"s_add_u32 s{S_SOFF}, s{S_T0}, s{S_BASE}")
        for m in range(3):
            self.vm(f"buffer_load_dwordx4 {self.V4(buf+4*m)}, v{V_KV}, {self.S(srd)}, s{S_SOFF} offen offset:{128*m} {p['kfl']}", f"g{g}")
        a(f"s_add_u32 s{sg}, s{sg}, 4")

    def k_group(self, tag, buf, after):
        a = self.a
        self.wait(tag)
        a(f"v_mov_b32 v{VS}, 0")
        for j in range(12): a(f"v_dot2c_f32_bf16 v{VS}, v{buf+j}, v{Q0+j}")
        after()
        self.dpp("v_add_f32", VS, VS, "quad_perm:[1,0,3,2]")
        self.dpp("v_add_f32", VS, VS, "quad_perm:[2,3,0,1]")
        self.dpp("v_add_f32", VS, VS, "row_half_mirror")
        skip = self.new("nors")
        a(f"v_cmp_gt_f32 vcc, v{VS}, v{VM}")
        a(f"s_cbranch_vccz {skip}")
        a(f"v_max_f32 v59, v{VS}, v{VM}")
        a(f"v_sub_f32 v60, v{VM}, v59")
        a(f"v_mul_f32 v60, s{S_C}, v60")
        a(f"v_exp_f32 v60, v60")
        a(f"v_mov_b32 v{VM}, v59")
        a(f"v_mul_f32 v{VMC}, s{S_C}, v59")
        a(f"v_mul_f32 v{VL}, v{VL}, v60")
        for k in range(24): a(f"v_mul_f32 v{ACC+k}, v{ACC+k}, v60")
        self.lab(skip)
        a(f"v_fma_f32 v{VT}, v{VS}, s{S_C}, -v{VMC}")
        a(f"v_exp_f32 v{VT}, v{VT}")
        a(f"v_cvt_pk_bf16_f32 v{VPL}, v{VT}, 0")
        a(f"v_lshlrev_b32 v{VPH}, 16, v{VPL}")
        a(f"v_add_f32 v{VL}, v{VL}, v{VPH}")

    def v_group(self, tag, buf, after):
        a = self.a
        self.wait(tag)
        for m in range(3):
            for dw in range(4):
                a(f"v_dot2c_f32_bf16 v{ACC+8*m+2*dw}, v{buf+4*m+dw}, v{VPL}")
                a(f"v_dot2c_f32_bf16 v{ACC+8*m+2*dw+1}, v{buf+4*m+dw}, v{VPH}")
        after()

    def wo_load(self, idx):
        i, m = divmod(idx, 5)
        r = A0 + 4*idx
        self.a(f"s_add_u32 s71, s70, {i*1280}")
        self.vm(f"buffer_load_dwordx4 {self.V4(r)}, v10, {self.S(SRD_1)}, s71 offen offset:{256*m} {self.p['wfl']}", "wo")
    def wo_setup(self):
        a = self.a
        self.srd(SRD_1, 'wo')
        a(f"v_lshrrev_b32 v8, 4, v{V_LANE}")
        a("v_mul_u32_u24 v8, 7680, v8")
        a(f"v_and_b32 v9, 15, v{V_LANE}")
        a("v_lshlrev_b32 v9, 4, v9")
        a("v_add_u32 v10, v8, v9")
        a(f"s_mul_i32 s70, s{S_H}, {192*1280}")
        a(f"s_mul_i32 s71, s3, {24*1280}")
        a("s_add_u32 s70, s70, s71")

    def stream(self):
        a = self.a; p = self.p
        P, N = p['P'], p['N']
        PB = [B0 + 12*i for i in range(2*P)]
        assert B0 + 12*2*P <= 256
        def buf_of(g): return PB[g] if g < 2*P else PB[(g - 2*P) % N]
        self.srd(SRD_K, 'k'); self.srd(SRD_V, 'v')
        a(f"s_mul_i32 s{S_BASE}, s2, {TB}")
        a(f"s_mul_i32 s{S_KG}, s2, {p['rot']}")
        a(f"s_add_u32 s{S_KG}, s{S_KG}, s3")
        a(f"s_mov_b32 s{S_VG}, s{S_KG}")
        for g in range(2*P): self.issue_group(g, PB[g])
        self.layernorm_qproj()
        self.q_stage_a()
        a("s_barrier")
        a("v_lshlrev_b32 v8, 4, v4")
        for m in range(3):
            a(f"ds_read_b128 {self.V4(Q0+4*m)}, v8 offset:{QB+128*m}")
        for k in range(24): a(f"v_mov_b32 v{ACC+k}, 0")
        a(f"v_mov_b32 v{VM}, 0xff800000")
        a(f"v_mov_b32 v{VMC}, 0xff800000")
        a(f"v_mov_b32 v{VL}, 0")
        self.wo_setup()
        a("s_waitcnt lgkmcnt(0)")
        T = 256
        U = N if N % 2 == 0 else 2*N
        H2 = 10
        while (T - N - 2*P - H2) % U: H2 += 1
        g0 = 2*P + H2
        iters = (T - N - g0)//U
        wo_next = [0]
        def group(g, issue=True, extra=0):
            def after():
                if issue and g + N >= 2*P:
                    self.issue_group(g + N, buf_of(g + N))
                for _ in range(extra):
                    if wo_next[0] < 30:
                        self.wo_load(wo_next[0]); wo_next[0] += 1
            (self.k_group if g % 2 == 0 else self.v_group)(f"g{g}", buf_of(g), after)
        for g in range(2*P): group(g)
        per = -(-30 // max(1, H2 - N))
        for g in range(2*P, g0): group(g, True, per if g < g0 - N else 0)
        assert wo_next[0] == 30
        tail = self.Q[-3*N:]
        assert tail == [f"g{g}" for g in range(g0, g0+N) for _ in range(3)], tail
        self.Q = list(tail)
        a(f"s_mov_b32 s{S_CNT}, {iters}")
        loop = self.new("loop")
        self.lab(loop)
        for u in range(U): group(g0 + u)
        a(f"s_sub_u32 s{S_CNT}, s{S_CNT}, 1")
        a(f"s_cmp_lg_u32 s{S_CNT}, 0")
        a(f"s_cbranch_scc1 {loop}")
        gl = g0 + U*iters
        assert self.Q == [f"g{g}" for g in range(g0+U, g0+U+N) for _ in range(3)], self.Q
        assert (gl - 2*P) % N == (g0 + U - 2*P) % N
        self.Q = [f"g{g}" for g in range(gl, gl+N) for _ in range(3)]
        assert gl + N == T
        for g in range(gl, T): group(g, False)
        a(f"v_mov_b32 v59, v{VM}")
        self.dpp("v_max_f32", 59, 59, "row_ror:8")
        self.rows_combine("v_max_f32", 59, 60)
        a(f"v_sub_f32 v60, v{VM}, v59")
        a(f"v_mul_f32 v60, s{S_C}, v60")
        a(f"v_exp_f32 v60, v60")
        a(f"v_mul_f32 v{VL}, v{VL}, v60")
        for k in range(24): a(f"v_mul_f32 v{ACC+k}, v{ACC+k}, v60")
        self.dpp("v_add_f32", VL, VL, "row_ror:8")
        for k in range(24): self.dpp("v_add_f32", ACC+k, ACC+k, "row_ror:8")
        self.rows_combine("v_add_f32", VL, 60)
        a(f"v_lshrrev_b32 v8, 4, v{V_LANE}")
        a("s_lshl_b32 s59, s3, 2")
        a("v_add_u32 v8, s59, v8")
        a("v_mul_u32_u24 v8, 784, v8")
        a("v_lshlrev_b32 v9, 5, v4")
        a("v_add_u32 v8, v8, v9")
        a("s_mov_b32 exec_lo, 0x00ff00ff"); a("s_mov_b32 exec_hi, 0x00ff00ff")
        for m in range(3):
            for hh in range(2):
                a(f"ds_write_b128 v8, {self.V4(ACC + 8*m + 4*hh)} offset:{OP + 256*m + 16*hh}")
        a("s_mov_b64 exec, 1")
        a("s_lshl_b32 s59, s3, 3")
        a("v_mov_b32 v8, s59")
        a(f"v_mov_b32 v60, v59")
        a(f"v_mov_b32 v61, v{VL}")
        a(f"ds_write_b64 v8, v[60:61] offset:{ML}")
        a("s_mov_b64 exec, -1")
        a("s_waitcnt vmcnt(0) lgkmcnt(0)"); self.Q = []

    def swap_reduce40(self, R):
        a = self.a
        for j in range(10):
            k = R + 4*j
            a(f"v_permlane32_swap_b32 v{k}, v{k+1}")
            a(f"v_permlane32_swap_b32 v{k+2}, v{k+3}")
        for j in range(10):
            k = R + 4*j
            a(f"v_add_f32 v{k}, v{k}, v{k+1}")
            a(f"v_add_f32 v{k+2}, v{k+2}, v{k+3}")
        for j in range(10):
            k = R + 4*j
            a(f"v_permlane16_swap_b32 v{k}, v{k+2}")
        for j in range(10):
            k = R + 4*j
            a(f"v_add_f32 v{k}, v{k}, v{k+2}")
    def perm_rho(self, dst, tmp):
        a = self.a
        a(f"v_lshrrev_b32 v{tmp}, 4, v{V_LANE}")
        a(f"v_and_b32 v{dst}, 1, v{tmp}")
        a(f"v_lshlrev_b32 v{dst}, 1, v{dst}")
        a(f"v_lshrrev_b32 v{tmp}, 1, v{tmp}")
        a(f"v_or_b32 v{dst}, v{dst}, v{tmp}")

    def aux(self):
        a = self.a; p = self.p
        self.layernorm_qproj()
        a("s_barrier")
        nz = self.new("nozero")
        a("s_cmp_lg_u32 s3, 4")
        a(f"s_cbranch_scc1 {nz}")
        a("v_mov_b32 v8, 0")
        a(f"v_lshlrev_b32 v9, 2, v{V_LANE}")
        for j in range(11): a(f"ds_write_b32 v9, v8 offset:{SS + 256*j}")
        a(f"s_lshl_b32 s59, s{S_B}, 2")
        a("v_mov_b32 v8, 1"); a("v_mov_b32 v9, 0")
        a("s_mov_b64 exec, 1")
        self.vm(f"buffer_atomic_add v8, v9, {self.S(SRD_DBG)}, s59 offen sc0", "t")
        a("s_mov_b64 exec, -1")
        self.wait_all()
        a("v_readfirstlane_b32 s60, v8")
        a("s_cmp_lg_u32 s60, 0")
        a(f"s_cbranch_scc1 {nz}")
        for k in range(4): a(f"v_mov_b32 v{16+k}, 0")
        a(f"v_lshlrev_b32 v9, 4, v{V_LANE}")
        a(f"s_mul_i32 s60, s{S_B}, 5120")
        for j in range(5):
            if j == 4: a("s_add_u32 s60, s60, 4096")
            self.vm(f"buffer_store_dwordx4 v[16:19], v9, {self.S(SRD_WS)}, s60 offen offset:{(1024*j) % 4096} sc1", "z")
        self.wait_all()
        a("s_add_u32 s59, s59, 32")
        a("v_mov_b32 v8, 1"); a("v_mov_b32 v9, 0")
        a("s_mov_b64 exec, 1")
        self.vm(f"buffer_store_dword v8, v9, {self.S(SRD_DBG)}, s59 offen sc1", "z")
        a("s_mov_b64 exec, -1")
        self.wait_all()
        self.lab(nz)
        noffn = self.new("noffn")
        a(f"s_cmp_ge_u32 s{S_H}, 24")
        a(f"s_cbranch_scc1 {noffn}")
        W1 = 64; W2 = 144
        a("s_sub_u32 s72, s3, 4")
        a(f"s_lshl_b32 s73, s{S_H}, 6")
        a("s_lshl_b32 s59, s72, 4")
        a("s_add_u32 s73, s73, s59")
        self.srd(SRD_0, 'w1'); self.srd(SRD_1, 'w2')
        a(f"v_lshrrev_b32 v8, 1, v{V_LANE}")
        a(f"v_and_b32 v9, 1, v{V_LANE}")
        a("v_mul_u32_u24 v10, 61440, v8")
        a("v_lshlrev_b32 v11, 4, v9")
        a("v_add_u32 v10, v10, v11")
        a("s_lshl_b32 s60, s73, 1")
        self.srd(SRD_K, 'b1')
        self.vm(f"buffer_load_dwordx4 v[224:227], v11, {self.S(SRD_K)}, s60 offen", "b1")
        for i in range(20):
            self.vm(f"buffer_load_dwordx4 {self.V4(W1+4*i)}, v10, {self.S(SRD_0)}, s60 offen {p['wfl']}", f"w1_{i}")
            if i < 19: a("s_add_u32 s60, s60, 3072")
        a(f"v_lshrrev_b32 v13, 4, v{V_LANE}")
        a("v_mul_u32_u24 v13, 5120, v13")
        a(f"v_and_b32 v14, 15, v{V_LANE}")
        a("v_lshlrev_b32 v14, 4, v14")
        a("v_add_u32 v13, v13, v14")
        a("s_mul_i32 s60, s73, 1280")
        for i in range(4):
            for m in range(5):
                self.vm(f"buffer_load_dwordx4 {self.V4(W2+4*(5*i+m))}, v13, {self.S(SRD_1)}, s60 offen offset:{256*m} {p['wfl']}", f"w2_{i}")
            if i < 3: a("s_add_u32 s60, s60, 1280")
        a("v_mul_u32_u24 v8, 40, v8")
        for k in range(5): a(f"ds_read_b64 v[{228+2*k}:{229+2*k}], v8 offset:{XN+8*k}")
        for k in range(8): a(f"v_mov_b32 v{ACC+k}, 0")
        a("s_waitcnt lgkmcnt(0)")
        for i in range(20):
            X = 228 + i//2
            if i % 2 == 0:
                a(f"v_and_b32 v57, 0xffff, v{X}")
                a(f"v_lshlrev_b32 v58, 16, v{X}")
            else:
                a(f"v_lshrrev_b32 v57, 16, v{X}")
                a(f"v_and_b32 v58, 0xffff0000, v{X}")
            self.wait(f"w1_{i}")
            for dw in range(4):
                a(f"v_dot2c_f32_bf16 v{ACC+2*dw}, v{W1+4*i+dw}, v57")
                a(f"v_dot2c_f32_bf16 v{ACC+2*dw+1}, v{W1+4*i+dw}, v58")
        for r in (8, 4, 2):
            for k in range(8): self.dpp("v_add_f32", ACC+k, ACC+k, f"row_ror:{r}")
        for sw in ("v_permlane16_swap_b32", "v_permlane32_swap_b32"):
            for k in range(8): a(f"v_mov_b32 v{ACC+8+k}, v{ACC+k}")
            for k in range(8): a(f"{sw} v{ACC+k}, v{ACC+8+k}")
            for k in range(8): a(f"v_add_f32 v{ACC+k}, v{ACC+k}, v{ACC+8+k}")
        self.wait("b1")
        for e in range(8):
            B = 224 + e//2
            if e % 2 == 0: a(f"v_lshlrev_b32 v57, 16, v{B}")
            else: a(f"v_and_b32 v57, 0xffff0000, v{B}")
            self.bf16r(ACC+e, ACC+e)
            a(f"v_add_f32 v{ACC+e}, v{ACC+e}, v57")
            self.bf16r(ACC+e, ACC+e)
            a(f"v_max_f32 v{ACC+e}, 0, v{ACC+e}")
            a(f"v_mul_f32 v{ACC+e}, v{ACC+e}, v{ACC+e}")
            self.bf16r(ACC+e, ACC+e)
        a("s_lshl_b32 s59, s72, 6")
        a("v_lshlrev_b32 v8, 5, v9")
        a("v_add_u32 v8, s59, v8")
        a("s_mov_b64 exec, 3")
        a(f"ds_write_b128 v8, v[{ACC}:{ACC+3}] offset:{R2}")
        a(f"ds_write_b128 v8, v[{ACC+4}:{ACC+7}] offset:{R2+16}")
        a("s_mov_b64 exec, -1")
        a(f"v_lshrrev_b32 v8, 4, v{V_LANE}")
        a("v_lshlrev_b32 v8, 4, v8")
        a("v_add_u32 v8, s59, v8")
        a("s_waitcnt lgkmcnt(0)")
        a(f"ds_read_b128 v[228:231], v8 offset:{R2}")
        for k in range(40): a(f"v_mov_b32 v{16+k}, 0")
        a("s_waitcnt lgkmcnt(0)")
        for i in range(4):
            a(f"v_lshrrev_b32 v57, 16, v{228+i}")
            self.wait(f"w2_{i}")
            for m in range(5):
                r = W2 + 4*(5*i+m)
                for dw in range(4):
                    a(f"v_dot2c_f32_bf16 v{16+8*m+2*dw}, v{r+dw}, v57")
                    a(f"v_dot2c_f32_bf16 v{16+8*m+2*dw+1}, v{r+dw}, v{228+i}")
        self.swap_reduce40(16)
        self.poll_ready()
        self.perm_rho(8, 9)
        a(f"v_and_b32 v9, 15, v{V_LANE}")
        a("v_lshl_add_u32 v8, v9, 3, v8")
        a("v_lshlrev_b32 v8, 2, v8")
        a(f"s_mul_i32 s59, s{S_B}, 5120")
        a("s_add_u32 s59, s59, 2560")
        for j in range(10):
            off = 4*(128*(j//2) + 4*(j % 2))
            self.vm(f"buffer_atomic_add_f32 v{16+4*j}, v8, {self.S(SRD_WS)}, s59 offen offset:{off}", "fa")
        done = self.new("ffndone")
        a(f"s_branch {done}")
        self.lab(noffn)
        self.poll_ready()
        self.lab(done)
        self.Q = []
        a("s_waitcnt vmcnt(0)")
        self.wo_setup()
        for idx in range(30): self.wo_load(idx)
        a("s_waitcnt vmcnt(0) lgkmcnt(0)"); self.Q = []

    def poll_ready(self):
        a = self.a
        lp = self.new("poll"); ok = self.new("pollok")
        a(f"s_lshl_b32 s59, s{S_B}, 2")
        a("s_add_u32 s59, s59, 32")
        a("v_mov_b32 v57, 0")
        a("s_mov_b32 s61, 0x200000")
        self.lab(lp)
        a(f"buffer_load_dword v58, v57, {self.S(SRD_DBG)}, s59 offen sc1")
        a("s_waitcnt vmcnt(0)")
        a("v_readfirstlane_b32 s60, v58")
        a("s_cmp_lg_u32 s60, 0")
        a(f"s_cbranch_scc1 {ok}")
        a("s_sub_u32 s61, s61, 1")
        a("s_cmp_eq_u32 s61, 0")
        a(f"s_cbranch_scc1 {ok}")
        a("s_sleep 8")
        a(f"s_branch {lp}")
        self.lab(ok)

    def epilogue(self):
        a = self.a
        a("s_barrier")
        a(f"v_and_b32 v9, 15, v{V_LANE}")
        a("v_mul_u32_u24 v8, 784, v9")
        a(f"v_lshrrev_b32 v11, 4, v{V_LANE}")
        a("v_mul_u32_u24 v11, 24, v11")
        a("v_add_u32 v8, v8, v11")
        a("s_mul_i32 s59, s3, 96")
        a("v_add_u32 v8, s59, v8")
        O = 184
        for k in range(3): a(f"ds_read_b64 v[{O+2*k}:{O+2*k+1}], v8 offset:{OP+8*k}")
        a("v_lshrrev_b32 v11, 2, v9")
        a("v_lshlrev_b32 v11, 3, v11")
        a(f"ds_read_b64 v[60:61], v11 offset:{ML}")
        for k in range(40): a(f"v_mov_b32 v{16+k}, 0")
        a("s_waitcnt lgkmcnt(0)")
        a("v_mov_b32 v59, v60")
        self.dpp("v_max_f32", 59, 59, "row_ror:8")
        self.dpp("v_max_f32", 59, 59, "row_ror:4")
        a("v_sub_f32 v60, v60, v59")
        a(f"v_mul_f32 v60, s{S_C}, v60")
        a("v_exp_f32 v60, v60")
        a("v_mul_f32 v61, v61, v60")
        for k in range(6): a(f"v_mul_f32 v{O+k}, v{O+k}, v60")
        self.dpp("v_add_f32", 61, 61, "row_ror:8")
        for k in range(6): self.dpp("v_add_f32", O+k, O+k, "row_ror:8")
        self.dpp("v_add_f32", 61, 61, "row_ror:4")
        for r in (4, 2, 1):
            for k in range(6): self.dpp("v_add_f32", O+k, O+k, f"row_ror:{r}")
        a("v_rcp_f32 v61, v61")
        for k in range(6): a(f"v_mul_f32 v{O+k}, v{O+k}, v61")
        for k in range(6):
            a(f"v_cvt_pk_bf16_f32 v{O+6+k}, v{O+k}, 0")
            a(f"v_cvt_pk_bf16_f32 v{O+k}, 0, v{O+k}")
        for i in range(6):
            for m in range(5):
                r = A0 + 4*(5*i+m)
                for dw in range(4):
                    a(f"v_dot2c_f32_bf16 v{16+8*m+2*dw}, v{r+dw}, v{O+6+i}")
                    a(f"v_dot2c_f32_bf16 v{16+8*m+2*dw+1}, v{r+dw}, v{O+i}")
        self.swap_reduce40(16)
        self.perm_rho(8, 11)
        a("v_mul_u32_u24 v8, 88, v8")
        a("v_add_u32 v8, v8, v9")
        a("v_lshlrev_b32 v8, 2, v8")
        for j in range(10):
            off = SS + 4*(88*4*(j % 2) + 16*(j//2))
            a(f"ds_add_f32 v8, v{16+4*j} offset:{off}")
        a("s_waitcnt lgkmcnt(0)")
        a("s_barrier")
        a("s_cmp_lg_u32 s3, 0")
        a("s_cbranch_scc1 L_end")
        a(f"v_and_b32 v8, 7, v{V_LANE}")
        a("v_mul_u32_u24 v8, 88, v8")
        a(f"v_lshrrev_b32 v9, 3, v{V_LANE}")
        a("v_add_u32 v8, v8, v9")
        a("v_lshlrev_b32 v8, 2, v8")
        for j in range(10): a(f"ds_read_b32 v{16+j}, v8 offset:{SS + 32*j}")
        a(f"v_lshlrev_b32 v9, 2, v{V_LANE}")
        a(f"s_mul_i32 s59, s{S_B}, 5120")
        a("s_waitcnt lgkmcnt(0)")
        for j in range(10):
            a(f"buffer_atomic_add_f32 v{16+j}, v9, {self.S(SRD_WS)}, s59 offen offset:{256*j}")
        a("s_waitcnt vmcnt(0)")
        a(f"s_lshl_b32 s60, s{S_B}, 2")
        a("s_add_u32 s60, s60, 64")
        a("v_mov_b32 v8, 1"); a("v_mov_b32 v11, 0")
        a("s_mov_b64 exec, 1")
        a(f"buffer_atomic_add v8, v11, {self.S(SRD_DBG)}, s60 offen sc0")
        a("s_mov_b64 exec, -1")
        a("s_waitcnt vmcnt(0)")
        a("v_readfirstlane_b32 s60, v8")
        a("s_cmp_lg_u32 s60, 31")
        a("s_cbranch_scc1 L_end")
        self.srd(SRD_0, 'x'); self.srd(SRD_1, 'b2'); self.srd(SRD_K, 'out')
        a(f"v_lshlrev_b32 v10, 3, v{V_LANE}")
        a("s_add_u32 s60, s59, 2560")
        for j in range(5):
            a(f"buffer_load_dwordx2 v[{16+2*j}:{17+2*j}], v10, {self.S(SRD_WS)}, s59 offen offset:{512*j} sc1")
            a(f"buffer_load_dwordx2 v[{26+2*j}:{27+2*j}], v10, {self.S(SRD_WS)}, s60 offen offset:{512*j} sc1")
        a(f"s_mul_i32 s61, s{S_B}, 1280")
        for j in range(5):
            a(f"buffer_load_dword v{36+j}, v9, {self.S(SRD_0)}, s61 offen offset:{256*j}")
            a(f"buffer_load_dword v{41+j}, v9, {self.S(SRD_1)}, 0 offen offset:{256*j}")
        a("s_waitcnt vmcnt(0)")
        for j in range(5):
            for hh in range(2):
                s = 16 + 2*j + hh; f = 26 + 2*j + hh
                if hh == 0:
                    a(f"v_lshlrev_b32 v57, 16, v{36+j}"); a(f"v_lshlrev_b32 v58, 16, v{41+j}")
                else:
                    a(f"v_and_b32 v57, 0xffff0000, v{36+j}"); a(f"v_and_b32 v58, 0xffff0000, v{41+j}")
                self.bf16r(s, s)
                self.bf16r(f, f)
                a(f"v_add_f32 v{f}, v{f}, v58")
                self.bf16r(f, f)
                a(f"v_mul_f32 v59, {hex(f2u(-math.log2(math.e)))}, v{f}")
                a("v_exp_f32 v59, v59")
                a("v_add_f32 v59, 1.0, v59")
                a("v_rcp_f32 v59, v59")
                a(f"v_mul_f32 v{f}, v{f}, v59")
                self.bf16r(f, f)
                a(f"v_mul_f32 v{s}, v{s}, v{f}")
                self.bf16r(s, s)
                a(f"v_add_f32 v{s}, v57, v{s}")
            a(f"v_cvt_pk_bf16_f32 v{46+j}, v{16+2*j}, v{17+2*j}")
        for j in range(5):
            a(f"buffer_store_dword v{46+j}, v9, {self.S(SRD_K)}, s61 offen offset:{256*j}")
        a("s_waitcnt vmcnt(0)")

    def build(self):
        a = self.a
        self.prologue_common()
        Q0s = list(self.Q)
        a("s_cmp_ge_u32 s3, 4")
        a("s_cbranch_scc1 L_aux")
        self.stream()
        a("s_branch L_epi")
        self.lab("L_aux")
        self.Q = list(Q0s)
        self.aux()
        self.lab("L_epi")
        self.epilogue()
        self.lab("L_end")
        a("s_endpgm")
        lines, n = fix(self.L)
        return lines, n

HEADER = open("cdna_kernels/" + NAME + ".s.ref").read().split("; Override launch")[0]

def emit(path, **kw):
    g = G(**kw)
    lines, n = g.build()
    txt = HEADER
    txt += "; Override launch geometry by editing the next line (default: block=256,\n"
    txt += f"; @launch grid=(256,1,1) block=(512,1,1) lds={LDS_BYTES}\n"
    txt += '.amdgcn_target "amdgcn-amd-amdhsa--gfx950"\n.text\n'
    txt += f".globl {NAME}_kernel\n.p2align 8\n.type {NAME}_kernel,@function\n{NAME}_kernel:\n"
    txt += "\n".join(lines) + "\n"
    txt += f""".section .rodata,"a"
.p2align 6
.amdhsa_kernel {NAME}_kernel
  .amdhsa_next_free_vgpr 256
  .amdhsa_next_free_sgpr 96
  .amdhsa_accum_offset 256
  .amdhsa_group_segment_fixed_size 0
  .amdhsa_kernarg_size 104
  .amdhsa_user_sgpr_count 2
  .amdhsa_user_sgpr_kernarg_segment_ptr 1
  .amdhsa_system_sgpr_workgroup_id_x 1
.end_amdhsa_kernel
"""
    open(path, "w").write(txt)
    print(path, "lines", len(lines), "nops inserted", n)

if __name__ == "__main__":
    kw = {}
    out = sys.argv[1]
    for x in sys.argv[2:]:
        k, v = x.split("=")
        kw[k] = int(v) if v.lstrip("-").isdigit() else v.replace("+", " ")
    emit(out, **kw)
```

```python
import sys, math, struct
from hazard import fix
from pads import insert_pads

NAME = "recurrent_scan__mha_block_cached__dense_activation_squared_relu__decode"
TB = 4096*384
def f2u(x): return struct.unpack("<I", struct.pack("<f", x))[0]
CSC = (192.0 ** -0.5) * math.log2(math.e)
OOB = 0x80000000

XN = 0
QB = 1280
ML = 1664
R2 = 1728
SS = 2048
QP = 5120
OP = QP
LDS_BYTES = QP + 32*768

V_LANE = 1
V_KV = 12
V_WO = 13
Q0 = 16
ACC = 28
VM, VL, VMC, VS, VT, VPL, VPH = 52, 53, 54, 55, 56, 57, 58
A0 = 64
def WQ(i): return 160 + 12*i if i < 2 else 64 + 12*(i-2)
def RB(j): return 184 + 12*j if j < 6 else 160 + 12*(j-6)
NB = 8
S_B, S_H = 30, 31
SRD_K, SRD_V, SRD_0, SRD_1, SRD_DBG, SRD_WS = 32, 36, 40, 44, 48, 52
S_BASE, S_KG, S_VG, S_T0, S_T1, S_T2, S_SOFF, S_IT, S_C, S_WOIT = 56, 57, 58, 59, 60, 61, 62, 63, 64, 65
S_R = 66
S_WO, S_WO2, S_J, S_F0 = 96, 97, 98, 99
PTR = dict(x=4, k=6, v=8, wq=10, wo=12, bx=14, w1=16, b1=18, w2=20, b2=22, out=24, dbg=26, ws=28)
SIZE = dict(x=10240, k=256*TB, v=256*TB, wq=640*6144*2, wo=6144*640*2, w1=640*1536*2, b1=3072, w2=1536*640*2, b2=1280, out=10240, dbg=256, ws=1610612736)

class G:
    def __init__(self, **kw):
        self.L = []
        self.Q = []
        self.uid = 0
        self.retired = set()
        self.p = dict(N=2, c=2, sk=16, rot=37, kfl="nt", wfl="", dbg=0, warm=1, spacing=64, b0=1)
        self.p.update(kw)
    def a(self, s): self.L.append("    " + s)
    def lab(self, s): self.L.append(s + ":")
    def cmt(self, s): self.L.append("    ; " + s)
    def new(self, s):
        self.uid += 1
        return f"L_{s}_{self.uid}"
    def vm(self, text, tag):
        self.a(text); self.Q.append(tag)
    def wait(self, tag):
        if tag not in self.Q:
            assert tag in self.retired, tag
            return
        idx = max(i for i, t in enumerate(self.Q) if t == tag)
        self.retired |= set(self.Q[:idx+1])
        n = len(self.Q) - 1 - idx
        assert n <= 63, n
        self.a(f"s_waitcnt vmcnt({n})")
        self.Q = self.Q[idx+1:]
    def wait_all(self):
        self.a("s_waitcnt vmcnt(0)"); self.retired |= set(self.Q); self.Q = []
    def srd(self, dst, name, size=None):
        p = PTR[name]
        self.a(f"s_mov_b32 s{dst}, s{p}")
        self.a(f"s_and_b32 s{dst+1}, s{p+1}, 0xffff")
        self.a(f"s_mov_b32 s{dst+2}, {size if size is not None else SIZE[name]}")
        self.a(f"s_mov_b32 s{dst+3}, 0x20000")
    def stamp(self, i):
        if self.p['dbg']:
            self.a(f"s_memrealtime s[{74+2*i}:{75+2*i}]")
    def S(self, r): return f"s[{r}:{r+3}]"
    def V4(self, r): return f"v[{r}:{r+3}]"
    def dpp(self, op, dst, src, ctl):
        self.a(f"{op}_dpp v{dst}, v{src}, v{src} {ctl} row_mask:0xf bank_mask:0xf")
    def rows_combine(self, op, v, tmp, sr=S_R):
        a = self.a
        for i in range(4): a(f"v_readlane_b32 s{sr+i}, v{v}, {16*i}")
        a(f"v_mov_b32 v{tmp}, s{sr}")
        a(f"{op} v{tmp}, s{sr+1}, v{tmp}")
        a(f"{op} v{tmp}, s{sr+2}, v{tmp}")
        a(f"{op} v{v}, s{sr+3}, v{tmp}")
    def bf16r(self, dst, src):
        self.a(f"v_cvt_pk_bf16_f32 v{dst}, 0, v{src}")
    def warm_dispatch(self, name, sel, nseg):
        a = self.a
        if not self.p['warm']: return
        a("s_mov_b64 exec, 0")
        for k in range(nseg):
            a(f"s_cmp_eq_u32 s{sel}, {k}")
            a(f"s_cbranch_scc1 {name}_s{k}_p0")
        self.lab(f"{name}_ret")
        a("s_mov_b64 exec, -1")
    def warm_begin(self, name, nseg):
        if self.p['warm']: self.cmt(f"@warm begin {name} {nseg}")
    def warm_end(self, name):
        if self.p['warm']: self.cmt(f"@warm end {name}")

    def entry(self):
        a = self.a; p = self.p
        a("s_cmp_ge_u32 s2, 256")
        a("s_cbranch_scc1 L_end")
        a("s_load_dwordx16 s[4:19], s[0:1], 0")
        a("s_load_dwordx8 s[20:27], s[0:1], 64")
        a("s_load_dwordx2 s[28:29], s[0:1], 96")
        if p['dbg']:
            for i in range(74, 96): a(f"s_mov_b32 s{i}, 0")
        self.stamp(0)
        a(f"v_lshrrev_b32 v2, 6, v0")
        a(f"v_and_b32 v{V_LANE}, 63, v0")
        a("v_readfirstlane_b32 s3, v2")
        a(f"s_lshr_b32 s{S_B}, s2, 5")
        a(f"s_and_b32 s{S_H}, s2, 31")
        a(f"v_lshrrev_b32 v3, 3, v{V_LANE}")
        a(f"v_and_b32 v4, 7, v{V_LANE}")
        a("s_mul_i32 s59, s3, 80")
        a("v_mul_u32_u24 v5, 10, v3")
        a("v_add_u32 v5, s59, v5")
        a("v_mul_u32_u24 v5, 12288, v5")
        a("v_lshlrev_b32 v6, 4, v4")
        a("v_add_u32 v5, v5, v6")
        a(f"v_lshlrev_b32 v7, 2, v{V_LANE}")
        a(f"s_mul_i32 s59, s{S_B}, 1280")
        a("s_mul_i32 s61, s3, 160")
        a("s_add_u32 s61, s61, s59")
        a(f"s_mul_i32 s60, s{S_H}, 384")
        a("s_waitcnt lgkmcnt(0)")
        self.srd(SRD_0, 'x')
        self.srd(SRD_1, 'wq')
        for j in range(5):
            self.vm(f"buffer_load_dword v{52+j}, v7, {self.S(SRD_0)}, s59 offen offset:{256*j}", "x")
        self.vm(f"buffer_load_dword v57, v7, {self.S(SRD_0)}, s61 offen", "x")
        for i in range(10):
            for m in range(3):
                self.vm(f"buffer_load_dwordx4 {self.V4(WQ(i)+4*m)}, v5, {self.S(SRD_1)}, s60 offen offset:{128*m} {p['wfl']}", f"wq{i}")
            if i < 9: a("s_add_u32 s60, s60, 12288")
        if p['b0']: a("s_barrier")
        c, sk = p['c'], p['sk']
        a(f"v_and_b32 v8, {c-1}, v3")
        a(f"v_lshrrev_b32 v9, {c.bit_length()-1}, v3")
        a(f"v_mul_u32_u24 v9, {sk}, v9")
        a("v_add_u32 v9, v9, v8")
        a("v_mul_u32_u24 v9, 384, v9")
        a(f"v_add_u32 v{V_KV}, v9, v6")
        self.srd(SRD_K, 'k'); self.srd(SRD_V, 'v')
        a(f"s_mul_i32 s{S_BASE}, s2, {TB}")
        a("s_cmp_ge_u32 s3, 4")
        a(f"s_cselect_b32 s{S_BASE}, {hex(OOB)}, s{S_BASE}")
        a(f"s_mul_i32 s{S_KG}, s2, {p['rot']}")
        a(f"s_add_u32 s{S_KG}, s{S_KG}, s3")
        a(f"s_mov_b32 s{S_VG}, s{S_KG}")
        for g in range(6): self.issue_group(g, RB(g), f"g{g}")
        self.srd(SRD_DBG, 'dbg')
        self.srd(SRD_WS, 'ws')
        a(f"s_mov_b32 s{S_C}, {hex(f2u(CSC))}")

    def issue_group(self, parity, buf, tag, oob_if=None):
        a = self.a; p = self.p
        c, sk = p['c'], p['sk']; per = sk//c; lp = per.bit_length()-1; np_ = 8//c
        isv = parity % 2
        sg = S_VG if isv else S_KG
        srd = SRD_V if isv else SRD_K
        a(f"s_and_b32 s{sg}, s{sg}, 511")
        if per > 1:
            a(f"s_lshr_b32 s{S_T0}, s{sg}, {lp}")
            a(f"s_and_b32 s{S_T1}, s{sg}, {per-1}")
            a(f"s_mul_i32 s{S_T0}, s{S_T0}, {np_*sk*384}")
            a(f"s_mul_i32 s{S_T1}, s{S_T1}, {c*384}")
            a(f"s_add_u32 s{S_T0}, s{S_T0}, s{S_T1}")
        else:
            a(f"s_mul_i32 s{S_T0}, s{sg}, {8*384}")
        a(f"s_add_u32 s{S_SOFF}, s{S_T0}, s{S_BASE}")
        if oob_if is not None:
            a(f"s_cmp_eq_u32 s{S_IT}, {oob_if}")
            a(f"s_cselect_b32 s{S_SOFF}, {hex(OOB)}, s{S_SOFF}")
        for m in range(3):
            self.vm(f"buffer_load_dwordx4 {self.V4(buf+4*m)}, v{V_KV}, {self.S(srd)}, s{S_SOFF} offen offset:{128*m} {p['kfl']}", tag)
        a(f"s_add_u32 s{sg}, s{sg}, 4")

    def ln_qproj(self):
        a = self.a
        XR = 52
        self.wait("x")
        a("v_mov_b32 v58, 0x3f803f80")
        a("v_mov_b32 v59, 0"); a("v_mov_b32 v60, 0")
        for j in range(5):
            a(f"v_dot2c_f32_bf16 v59, v{XR+j}, v58")
            a(f"v_dot2c_f32_bf16 v60, v{XR+j}, v{XR+j}")
        for r in (8, 4, 2, 1):
            self.dpp("v_add_f32", 59, 59, f"row_ror:{r}")
            self.dpp("v_add_f32", 60, 60, f"row_ror:{r}")
        self.rows_combine("v_add_f32", 59, 61, S_R)
        self.rows_combine("v_add_f32", 60, 62, S_R+4)
        a(f"v_mul_f32 v59, {hex(f2u(1.0/640))}, v59")
        a(f"v_mul_f32 v60, {hex(f2u(1.0/640))}, v60")
        a("v_fma_f32 v60, -v59, v59, v60")
        a("v_max_f32 v60, 0, v60")
        self.bf16r(59, 59)
        self.bf16r(60, 60)
        a(f"v_add_f32 v60, {hex(f2u(1e-5))}, v60")
        self.bf16r(60, 60)
        a("v_sqrt_f32 v60, v60")
        self.bf16r(60, 60)
        a("v_rcp_f32 v61, v60")
        a("v_lshlrev_b32 v52, 16, v57")
        a("v_and_b32 v53, 0xffff0000, v57")
        for r in (52, 53):
            a(f"v_sub_f32 v{r}, v{r}, v59")
            self.bf16r(r, r)
        for r in (52, 53):
            a(f"v_mul_f32 v54, v{r}, v61")
            a(f"v_fma_f32 v55, -v54, v60, v{r}")
            a(f"v_fma_f32 v{r}, v55, v61, v54")
        a("v_cvt_pk_bf16_f32 v52, v52, v53")
        a("s_mul_i32 s59, s3, 160")
        a("v_add_u32 v8, s59, v7")
        a("s_mov_b32 exec_lo, -1"); a("s_mov_b32 exec_hi, 0xff")
        a(f"ds_write_b32 v8, v52 offset:{XN}")
        a("s_mov_b64 exec, -1")
        a("v_mul_u32_u24 v8, 20, v3")
        a("v_add_u32 v8, s59, v8")
        a("s_waitcnt lgkmcnt(0)")
        for j in range(5):
            a(f"ds_read_b32 v{XR+j}, v8 offset:{XN+4*j}")
        for k in range(24): a(f"v_mov_b32 v{ACC+k}, 0")
        a("s_waitcnt lgkmcnt(0)")
        for i in range(10):
            X = XR + i//2
            if i % 2 == 0:
                a(f"v_and_b32 v57, 0xffff, v{X}")
                a(f"v_lshlrev_b32 v58, 16, v{X}")
            else:
                a(f"v_lshrrev_b32 v57, 16, v{X}")
                a(f"v_and_b32 v58, 0xffff0000, v{X}")
            self.wait(f"wq{i}")
            for m in range(3):
                r = WQ(i) + 4*m
                for dw in range(4):
                    a(f"v_dot2c_f32_bf16 v{ACC+8*m+2*dw}, v{r+dw}, v57")
                    a(f"v_dot2c_f32_bf16 v{ACC+8*m+2*dw+1}, v{r+dw}, v58")
            if i == 1:
                self.issue_group(6, RB(6), "g6"); self.issue_group(7, RB(7), "g7")
        for k in range(24): self.dpp("v_add_f32", ACC+k, ACC+k, "row_ror:8")
        a(f"v_lshrrev_b32 v8, 4, v{V_LANE}")
        a("s_lshl_b32 s59, s3, 2")
        a("v_add_u32 v8, s59, v8")
        a("v_mul_u32_u24 v8, 768, v8")
        a("v_lshlrev_b32 v9, 5, v4")
        a("v_add_u32 v8, v8, v9")
        a("s_mov_b32 exec_lo, 0x00ff00ff"); a("s_mov_b32 exec_hi, 0x00ff00ff")
        for m in range(3):
            for hh in range(2):
                a(f"ds_write_b128 v8, {self.V4(ACC + 8*m + 4*hh)} offset:{QP + 256*m + 16*hh}")
        a("s_mov_b64 exec, -1")
        a("s_waitcnt lgkmcnt(0)")
        self.stamp(1)
        a("s_barrier")
        skip = self.new("noqa")
        a("s_cmp_ge_u32 s3, 3")
        a(f"s_cbranch_scc1 {skip}")
        a("v_lshlrev_b32 v8, 2, v0")
        for r in range(16): a(f"ds_read_b32 v{ACC+r}, v8 offset:{QP + 768*r}")
        for r in range(16): a(f"ds_read_b32 v{A0+r}, v8 offset:{QP + 768*(16+r)}")
        a("s_waitcnt lgkmcnt(8)")
        for r in range(8): a(f"v_add_f32 v{ACC+r}, v{ACC+r}, v{ACC+8+r}")
        a("s_waitcnt lgkmcnt(0)")
        for r in range(8): a(f"v_add_f32 v{ACC+r}, v{ACC+r}, v{A0+r}")
        for r in range(8): a(f"v_add_f32 v{ACC+r}, v{ACC+r}, v{A0+8+r}")
        for st in (4, 2, 1):
            for r in range(st): a(f"v_add_f32 v{ACC+r}, v{ACC+r}, v{ACC+st+r}")
        a(f"v_cvt_pk_bf16_f32 v57, v{ACC}, v{ACC}")
        a("v_lshlrev_b32 v8, 1, v0")
        a(f"ds_write_b16 v8, v57 offset:{QB}")
        a("s_waitcnt lgkmcnt(0)")
        self.lab(skip)
        a("s_barrier")
        self.stamp(2)

    def k_group(self, buf, nwait, after):
        a = self.a
        a(f"s_waitcnt vmcnt({nwait})")
        a(f"v_mov_b32 v{VS}, 0")
        for j in range(12): a(f"v_dot2c_f32_bf16 v{VS}, v{buf+j}, v{Q0+j}")
        after()
        self.dpp("v_add_f32", VS, VS, "quad_perm:[1,0,3,2]")
        self.dpp("v_add_f32", VS, VS, "quad_perm:[2,3,0,1]")
        self.dpp("v_add_f32", VS, VS, "row_half_mirror")
        skip = self.new("nors")
        a(f"v_cmp_gt_f32 vcc, v{VS}, v{VM}")
        a(f"s_cbranch_vccz {skip}")
        a(f"v_max_f32 v59, v{VS}, v{VM}")
        a(f"v_sub_f32 v60, v{VM}, v59")
        a(f"v_mul_f32 v60, s{S_C}, v60")
        a(f"v_exp_f32 v60, v60")
        a(f"v_mov_b32 v{VM}, v59")
        a(f"v_mul_f32 v{VMC}, s{S_C}, v59")
        a(f"v_mul_f32 v{VL}, v{VL}, v60")
        for k in range(24): a(f"v_mul_f32 v{ACC+k}, v{ACC+k}, v60")
        self.lab(skip)
        a(f"v_fma_f32 v{VT}, v{VS}, s{S_C}, -v{VMC}")
        a(f"v_exp_f32 v{VT}, v{VT}")
        a(f"v_cvt_pk_bf16_f32 v{VPL}, v{VT}, 0")
        a(f"v_lshlrev_b32 v{VPH}, 16, v{VPL}")
        a(f"v_add_f32 v{VL}, v{VL}, v{VPH}")

    def v_group(self, buf, nwait, after):
        a = self.a
        a(f"s_waitcnt vmcnt({nwait})")
        for m in range(3):
            for dw in range(4):
                a(f"v_dot2c_f32_bf16 v{ACC+8*m+2*dw}, v{buf+4*m+dw}, v{VPL}")
                a(f"v_dot2c_f32_bf16 v{ACC+8*m+2*dw+1}, v{buf+4*m+dw}, v{VPH}")
        after()

    def wo_setup(self, rows_per_group, row0_sreg_code):
        a = self.a
        self.srd(SRD_1, 'wo')
        a(f"v_lshrrev_b32 v8, 4, v{V_LANE}")
        a(f"v_mul_u32_u24 v8, {rows_per_group*1280}, v8")
        a(f"v_and_b32 v9, 15, v{V_LANE}")
        a("v_lshlrev_b32 v9, 4, v9")
        a(f"v_add_u32 v{V_WO}, v8, v9")
        row0_sreg_code()
        a(f"s_mul_i32 s{S_WO}, s{S_H}, 192")
        a(f"s_add_u32 s{S_WO}, s{S_WO}, s{S_WO2}")
        a(f"s_mul_i32 s{S_WO}, s{S_WO}, 1280")
    def wo_loads(self, nrows):
        a = self.a
        a(f"s_mov_b32 s{S_WO2}, s{S_WO}")
        for i in range(nrows):
            for m in range(5):
                self.vm(f"buffer_load_dwordx4 {self.V4(A0+4*(5*i+m))}, v{V_WO}, {self.S(SRD_1)}, s{S_WO2} offen offset:{256*m} {self.p['wfl']}", "wo")
            if i < nrows-1: a(f"s_add_u32 s{S_WO2}, s{S_WO2}, 1280")

    def stream(self):
        a = self.a; p = self.p
        N = p['N']
        a("v_lshlrev_b32 v8, 4, v4")
        for m in range(3):
            a(f"ds_read_b128 {self.V4(Q0+4*m)}, v8 offset:{QB+128*m}")
        for k in range(24): a(f"v_mov_b32 v{ACC+k}, 0")
        a(f"v_mov_b32 v{VM}, 0xff800000")
        a(f"v_mov_b32 v{VMC}, 0xff800000")
        a(f"v_mov_b32 v{VL}, 0")
        self.wo_setup(4, lambda: a(f"s_lshl_b32 s{S_WO2}, s3, 4"))
        a(f"s_and_b32 s{S_WOIT}, s2, 15")
        a(f"s_add_u32 s{S_WOIT}, s{S_WOIT}, 2")
        a(f"s_mov_b32 s{S_IT}, 0")
        a("s_waitcnt lgkmcnt(0)")
        self.stamp(3)
        loop = self.new("loop")
        self.lab(loop)
        NIT = 256//NB
        for u in range(NB):
            def after(u=u):
                bn = (u + N) % NB
                if u + N < NB:
                    skip = self.new("skipissue")
                    a(f"s_cmp_eq_u32 s{S_IT}, 0")
                    a(f"s_cbranch_scc1 {skip}")
                    self.issue_group(u + N, RB(bn), "x")
                    self.lab(skip)
                else:
                    self.issue_group(u + N, RB(bn), "x", oob_if=NIT-1)
            (self.k_group if u % 2 == 0 else self.v_group)(RB(u), 3*(N-1), after)
        skip = self.new("nowo")
        a(f"s_cmp_lg_u32 s{S_IT}, s{S_WOIT}")
        a(f"s_cbranch_scc1 {skip}")
        self.wo_loads(4)
        self.lab(skip)
        a(f"s_add_u32 s{S_IT}, s{S_IT}, 1")
        a(f"s_cmp_lg_u32 s{S_IT}, {NIT}")
        a(f"s_cbranch_scc1 {loop}")
        self.Q = []

    def stream_tail(self):
        a = self.a
        self.stamp(4)
        a(f"v_mov_b32 v59, v{VM}")
        self.dpp("v_max_f32", 59, 59, "row_ror:8")
        self.rows_combine("v_max_f32", 59, 60)
        a(f"v_sub_f32 v60, v{VM}, v59")
        a(f"v_mul_f32 v60, s{S_C}, v60")
        a(f"v_exp_f32 v60, v60")
        a(f"v_lshrrev_b32 v8, 4, v{V_LANE}")
        a("s_lshl_b32 s59, s3, 2")
        a("v_add_u32 v8, s59, v8")
        a("v_mul_u32_u24 v8, 784, v8")
        a("v_lshlrev_b32 v9, 5, v4")
        a("v_add_u32 v8, v8, v9")
        a(f"v_mul_f32 v{VL}, v{VL}, v60")
        for k in range(24): a(f"v_mul_f32 v{ACC+k}, v{ACC+k}, v60")
        self.dpp("v_add_f32", VL, VL, "row_ror:8")
        for k in range(24): self.dpp("v_add_f32", ACC+k, ACC+k, "row_ror:8")
        self.rows_combine("v_add_f32", VL, 60)
        a("s_mov_b32 exec_lo, 0x00ff00ff"); a("s_mov_b32 exec_hi, 0x00ff00ff")
        for m in range(3):
            for hh in range(2):
                a(f"ds_write_b128 v8, {self.V4(ACC + 8*m + 4*hh)} offset:{OP + 256*m + 16*hh}")
        a("s_mov_b64 exec, 1")
        a("s_lshl_b32 s59, s3, 3")
        a("v_mov_b32 v8, s59")
        a(f"v_mov_b32 v60, v59")
        a(f"v_mov_b32 v61, v{VL}")
        a(f"ds_write_b64 v8, v[60:61] offset:{ML}")
        a("s_mov_b64 exec, -1")
        a("s_waitcnt vmcnt(0) lgkmcnt(0)"); self.Q = []

    def project(self, nrows, dbyte_code):
        a = self.a
        O = 224
        a(f"v_and_b32 v9, 15, v{V_LANE}")
        a("v_mul_u32_u24 v8, 784, v9")
        a(f"v_lshrrev_b32 v11, 4, v{V_LANE}")
        a(f"v_mul_u32_u24 v11, {4*nrows}, v11")
        a("v_add_u32 v8, v8, v11")
        dbyte_code()
        a("v_add_u32 v8, s59, v8")
        for k in range(nrows//4): a(f"ds_read_b128 {self.V4(O+4*k)}, v8 offset:{OP+16*k}")
        a("v_lshrrev_b32 v11, 2, v9")
        a("v_lshlrev_b32 v11, 3, v11")
        a(f"ds_read_b64 v[60:61], v11 offset:{ML}")
        for k in range(40): a(f"v_mov_b32 v{16+k}, 0")
        a("s_waitcnt lgkmcnt(0)")
        a("v_mov_b32 v59, v60")
        self.dpp("v_max_f32", 59, 59, "row_ror:8")
        self.dpp("v_max_f32", 59, 59, "row_ror:4")
        a("v_sub_f32 v60, v60, v59")
        a(f"v_mul_f32 v60, s{S_C}, v60")
        a("v_exp_f32 v60, v60")
        a("v_mul_f32 v61, v61, v60")
        for k in range(nrows): a(f"v_mul_f32 v{O+k}, v{O+k}, v60")
        self.dpp("v_add_f32", 61, 61, "row_ror:8")
        for k in range(nrows): self.dpp("v_add_f32", O+k, O+k, "row_ror:8")
        self.dpp("v_add_f32", 61, 61, "row_ror:4")
        for k in range(nrows): self.dpp("v_add_f32", O+k, O+k, "row_ror:4")
        a("v_rcp_f32 v61, v61")
        for r in (2, 1):
            for k in range(nrows): self.dpp("v_add_f32", O+k, O+k, f"row_ror:{r}")
        for k in range(nrows): a(f"v_mul_f32 v{O+k}, v{O+k}, v61")
        for k in range(nrows):
            a(f"v_cvt_pk_bf16_f32 v{O+8+k}, v{O+k}, 0")
            a(f"v_cvt_pk_bf16_f32 v{O+k}, 0, v{O+k}")
        for i in range(nrows):
            for m in range(5):
                r = A0 + 4*(5*i+m)
                for dw in range(4):
                    a(f"v_dot2c_f32_bf16 v{16+8*m+2*dw}, v{r+dw}, v{O+8+i}")
                    a(f"v_dot2c_f32_bf16 v{16+8*m+2*dw+1}, v{r+dw}, v{O+i}")

    def swap_reduce40(self, R):
        a = self.a
        for j in range(10):
            k = R + 4*j
            a(f"v_permlane32_swap_b32 v{k}, v{k+1}")
            a(f"v_permlane32_swap_b32 v{k+2}, v{k+3}")
        for j in range(10):
            k = R + 4*j
            a(f"v_add_f32 v{k}, v{k}, v{k+1}")
            a(f"v_add_f32 v{k+2}, v{k+2}, v{k+3}")
        for j in range(10):
            k = R + 4*j
            a(f"v_permlane16_swap_b32 v{k}, v{k+2}")
        for j in range(10):
            k = R + 4*j
            a(f"v_add_f32 v{k}, v{k}, v{k+2}")
    def perm_rho(self, dst, tmp):
        a = self.a
        a(f"v_lshrrev_b32 v{tmp}, 4, v{V_LANE}")
        a(f"v_and_b32 v{dst}, 1, v{tmp}")
        a(f"v_lshlrev_b32 v{dst}, 1, v{dst}")
        a(f"v_lshrrev_b32 v{tmp}, 1, v{tmp}")
        a(f"v_or_b32 v{dst}, v{dst}, v{tmp}")

    def epi_common(self):
        a = self.a
        self.swap_reduce40(16)
        self.perm_rho(8, 11)
        a(f"v_and_b32 v9, 15, v{V_LANE}")
        a("v_mul_u32_u24 v8, 88, v8")
        a("v_add_u32 v8, v8, v9")
        a("v_lshlrev_b32 v8, 2, v8")
        for j in range(10):
            off = SS + 4*(88*4*(j % 2) + 16*(j//2))
            a(f"ds_add_f32 v8, v{16+4*j} offset:{off}")
        a("s_waitcnt lgkmcnt(0)")
        a("s_barrier")
        self.stamp(7)
        a("s_cmp_lg_u32 s3, 0")
        a("s_cbranch_scc1 L_fin")
        a(f"v_and_b32 v8, 7, v{V_LANE}")
        a("v_mul_u32_u24 v8, 88, v8")
        a(f"v_lshrrev_b32 v9, 3, v{V_LANE}")
        a("v_add_u32 v8, v8, v9")
        a("v_lshlrev_b32 v8, 2, v8")
        for j in range(10): a(f"ds_read_b32 v{16+j}, v8 offset:{SS + 32*j}")
        a(f"v_lshlrev_b32 v9, 2, v{V_LANE}")
        a(f"s_mul_i32 s59, s{S_B}, 5120")
        a("s_waitcnt lgkmcnt(0)")
        for j in range(10):
            a(f"buffer_atomic_add_f32 v{16+j}, v9, {self.S(SRD_WS)}, s59 offen offset:{256*j}")
        self.srd(SRD_0, 'x'); self.srd(SRD_1, 'b2'); self.srd(SRD_K, 'out')
        a(f"s_mul_i32 s61, s{S_B}, 1280")
        a("s_waitcnt vmcnt(0)")
        a(f"s_lshl_b32 s60, s{S_B}, 2")
        a("s_add_u32 s60, s60, 64")
        a("v_mov_b32 v8, 1"); a("v_mov_b32 v11, 0")
        a("s_mov_b64 exec, 1")
        a(f"buffer_atomic_add v8, v11, {self.S(SRD_DBG)}, s60 offen sc0")
        a("s_mov_b64 exec, -1")
        for j in range(5):
            a(f"buffer_load_dword v{36+j}, v9, {self.S(SRD_0)}, s61 offen offset:{256*j}")
            a(f"buffer_load_dword v{41+j}, v9, {self.S(SRD_1)}, 0 offen offset:{256*j}")
        a("s_waitcnt vmcnt(10)")
        a("v_readfirstlane_b32 s60, v8")
        self.stamp(8)
        a("s_cmp_lg_u32 s60, 31")
        a("s_cbranch_scc1 L_fin")
        a(f"v_lshlrev_b32 v10, 3, v{V_LANE}")
        a("s_add_u32 s60, s59, 2560")
        for j in range(5):
            a(f"buffer_load_dwordx2 v[{16+2*j}:{17+2*j}], v10, {self.S(SRD_WS)}, s59 offen offset:{512*j} sc1")
            a(f"buffer_load_dwordx2 v[{26+2*j}:{27+2*j}], v10, {self.S(SRD_WS)}, s60 offen offset:{512*j} sc1")
        a("s_waitcnt vmcnt(0)")
        for j in range(5):
            for hh in range(2):
                s = 16 + 2*j + hh; f = 26 + 2*j + hh
                if hh == 0:
                    a(f"v_lshlrev_b32 v57, 16, v{36+j}"); a(f"v_lshlrev_b32 v58, 16, v{41+j}")
                else:
                    a(f"v_and_b32 v57, 0xffff0000, v{36+j}"); a(f"v_and_b32 v58, 0xffff0000, v{41+j}")
                self.bf16r(s, s)
                self.bf16r(f, f)
                a(f"v_add_f32 v{f}, v{f}, v58")
                self.bf16r(f, f)
                a(f"v_mul_f32 v59, {hex(f2u(-math.log2(math.e)))}, v{f}")
                a("v_exp_f32 v59, v59")
                a("v_add_f32 v59, 1.0, v59")
                a("v_rcp_f32 v59, v59")
                a(f"v_mul_f32 v{f}, v{f}, v59")
                self.bf16r(f, f)
                a(f"v_mul_f32 v{s}, v{s}, v{f}")
                self.bf16r(s, s)
                a(f"v_add_f32 v{s}, v57, v{s}")
            a(f"v_cvt_pk_bf16_f32 v{46+j}, v{16+2*j}, v{17+2*j}")
        for j in range(5):
            a(f"buffer_store_dword v{46+j}, v9, {self.S(SRD_K)}, s61 offen offset:{256*j}")
        self.stamp(9)

    def poll_ready(self):
        a = self.a
        lp = self.new("poll"); ok = self.new("pollok")
        a(f"s_lshl_b32 s59, s{S_B}, 2")
        a("s_add_u32 s59, s59, 32")
        a("v_mov_b32 v57, 0")
        a("s_mov_b32 s61, 0x200000")
        self.lab(lp)
        a(f"buffer_load_dword v58, v57, {self.S(SRD_DBG)}, s59 offen sc1")
        a("s_waitcnt vmcnt(0)")
        a("v_readfirstlane_b32 s60, v58")
        a("s_cmp_lg_u32 s60, 0")
        a(f"s_cbranch_scc1 {ok}")
        a("s_sub_u32 s61, s61, 1")
        a("s_cmp_eq_u32 s61, 0")
        a(f"s_cbranch_scc1 {ok}")
        a("s_sleep 8")
        a(f"s_branch {lp}")
        self.lab(ok)

    def aux(self):
        a = self.a; p = self.p
        self.wait_all()
        a(f"s_sub_u32 s{S_J}, s3, 4")
        nz = self.new("nozero")
        a("s_cmp_lg_u32 s3, 4")
        a(f"s_cbranch_scc1 {nz}")
        a("v_mov_b32 v8, 0")
        for j in range(11): a(f"ds_write_b32 v7, v8 offset:{SS + 256*j}")
        a(f"s_lshl_b32 s59, s{S_B}, 2")
        a("v_mov_b32 v8, 1"); a("v_mov_b32 v9, 0")
        a("s_mov_b64 exec, 1")
        self.vm(f"buffer_atomic_add v8, v9, {self.S(SRD_DBG)}, s59 offen sc0", "t")
        a("s_mov_b64 exec, -1")
        self.wait_all()
        a("v_readfirstlane_b32 s60, v8")
        a("s_cmp_lg_u32 s60, 0")
        a(f"s_cbranch_scc1 {nz}")
        for k in range(4): a(f"v_mov_b32 v{16+k}, 0")
        a(f"v_lshlrev_b32 v9, 4, v{V_LANE}")
        a(f"s_mul_i32 s60, s{S_B}, 5120")
        for j in range(5):
            if j == 4: a("s_add_u32 s60, s60, 4096")
            self.vm(f"buffer_store_dwordx4 v[16:19], v9, {self.S(SRD_WS)}, s60 offen offset:{(1024*j) % 4096} sc1", "z")
        self.wait_all()
        a("s_add_u32 s59, s59, 32")
        a("v_mov_b32 v8, 1"); a("v_mov_b32 v9, 0")
        a("s_mov_b64 exec, 1")
        self.vm(f"buffer_store_dword v8, v9, {self.S(SRD_DBG)}, s59 offen sc1", "z")
        a("s_mov_b64 exec, -1")
        self.wait_all()
        self.lab(nz)
        noffn = self.new("noffn")
        a(f"s_cmp_ge_u32 s{S_H}, 24")
        a(f"s_cbranch_scc1 {noffn}")
        W1 = 64; W2 = 144
        a(f"s_lshl_b32 s{S_F0}, s{S_H}, 6")
        a(f"s_lshl_b32 s59, s{S_J}, 4")
        a(f"s_add_u32 s{S_F0}, s{S_F0}, s59")
        self.srd(SRD_0, 'w1'); self.srd(SRD_1, 'w2'); self.srd(SRD_K, 'b1')
        a(f"v_lshrrev_b32 v8, 1, v{V_LANE}")
        a(f"v_and_b32 v9, 1, v{V_LANE}")
        a("v_mul_u32_u24 v10, 61440, v8")
        a("v_lshlrev_b32 v11, 4, v9")
        a("v_add_u32 v10, v10, v11")
        a(f"s_lshl_b32 s60, s{S_F0}, 1")
        self.vm(f"buffer_load_dwordx4 v[224:227], v11, {self.S(SRD_K)}, s60 offen", "b1")
        for i in range(20):
            self.vm(f"buffer_load_dwordx4 {self.V4(W1+4*i)}, v10, {self.S(SRD_0)}, s60 offen {p['wfl']}", f"w1_{i}")
            if i < 19: a("s_add_u32 s60, s60, 3072")
        a(f"v_lshrrev_b32 v14, 4, v{V_LANE}")
        a("v_mul_u32_u24 v14, 5120, v14")
        a(f"v_and_b32 v15, 15, v{V_LANE}")
        a("v_lshlrev_b32 v15, 4, v15")
        a("v_add_u32 v14, v14, v15")
        a(f"s_mul_i32 s60, s{S_F0}, 1280")
        for i in range(4):
            for m in range(5):
                self.vm(f"buffer_load_dwordx4 {self.V4(W2+4*(5*i+m))}, v14, {self.S(SRD_1)}, s60 offen offset:{256*m} {p['wfl']}", f"w2_{i}")
            if i < 3: a("s_add_u32 s60, s60, 1280")
        a("v_mul_u32_u24 v8, 40, v8")
        for k in range(5): a(f"ds_read_b64 v[{228+2*k}:{229+2*k}], v8 offset:{XN+8*k}")
        for k in range(8): a(f"v_mov_b32 v{ACC+k}, 0")
        a("s_waitcnt lgkmcnt(0)")
        for i in range(20):
            X = 228 + i//2
            if i % 2 == 0:
                a(f"v_and_b32 v57, 0xffff, v{X}")
                a(f"v_lshlrev_b32 v58, 16, v{X}")
            else:
                a(f"v_lshrrev_b32 v57, 16, v{X}")
                a(f"v_and_b32 v58, 0xffff0000, v{X}")
            self.wait(f"w1_{i}")
            for dw in range(4):
                a(f"v_dot2c_f32_bf16 v{ACC+2*dw}, v{W1+4*i+dw}, v57")
                a(f"v_dot2c_f32_bf16 v{ACC+2*dw+1}, v{W1+4*i+dw}, v58")
        for r in (8, 4, 2):
            for k in range(8): self.dpp("v_add_f32", ACC+k, ACC+k, f"row_ror:{r}")
        for sw in ("v_permlane16_swap_b32", "v_permlane32_swap_b32"):
            for k in range(8): a(f"v_mov_b32 v{ACC+8+k}, v{ACC+k}")
            for k in range(8): a(f"{sw} v{ACC+k}, v{ACC+8+k}")
            for k in range(8): a(f"v_add_f32 v{ACC+k}, v{ACC+k}, v{ACC+8+k}")
        self.wait("b1")
        for e in range(8):
            B = 224 + e//2
            if e % 2 == 0: a(f"v_lshlrev_b32 v57, 16, v{B}")
            else: a(f"v_and_b32 v57, 0xffff0000, v{B}")
            self.bf16r(ACC+e, ACC+e)
            a(f"v_add_f32 v{ACC+e}, v{ACC+e}, v57")
            self.bf16r(ACC+e, ACC+e)
            a(f"v_max_f32 v{ACC+e}, 0, v{ACC+e}")
            a(f"v_mul_f32 v{ACC+e}, v{ACC+e}, v{ACC+e}")
            self.bf16r(ACC+e, ACC+e)
        a(f"s_lshl_b32 s59, s{S_J}, 6")
        a("v_lshlrev_b32 v8, 5, v9")
        a("v_add_u32 v8, s59, v8")
        a("s_mov_b64 exec, 3")
        a(f"ds_write_b128 v8, v[{ACC}:{ACC+3}] offset:{R2}")
        a(f"ds_write_b128 v8, v[{ACC+4}:{ACC+7}] offset:{R2+16}")
        a("s_mov_b64 exec, -1")
        a(f"v_lshrrev_b32 v8, 4, v{V_LANE}")
        a("v_lshlrev_b32 v8, 4, v8")
        a("v_add_u32 v8, s59, v8")
        a("s_waitcnt lgkmcnt(0)")
        a(f"ds_read_b128 v[228:231], v8 offset:{R2}")
        for k in range(40): a(f"v_mov_b32 v{16+k}, 0")
        a("s_waitcnt lgkmcnt(0)")
        for i in range(4):
            a(f"v_lshrrev_b32 v57, 16, v{228+i}")
            self.wait(f"w2_{i}")
            for m in range(5):
                r = W2 + 4*(5*i+m)
                for dw in range(4):
                    a(f"v_dot2c_f32_bf16 v{16+8*m+2*dw}, v{r+dw}, v57")
                    a(f"v_dot2c_f32_bf16 v{16+8*m+2*dw+1}, v{r+dw}, v{228+i}")
        self.swap_reduce40(16)
        self.poll_ready()
        self.perm_rho(8, 9)
        a(f"v_and_b32 v9, 15, v{V_LANE}")
        a("v_lshl_add_u32 v8, v9, 3, v8")
        a("v_lshlrev_b32 v8, 2, v8")
        a(f"s_mul_i32 s59, s{S_B}, 5120")
        a("s_add_u32 s59, s59, 2560")
        for j in range(10):
            off = 4*(128*(j//2) + 4*(j % 2))
            self.vm(f"buffer_atomic_add_f32 v{16+4*j}, v8, {self.S(SRD_WS)}, s59 offen offset:{off}", "fa")
        done = self.new("ffndone")
        a(f"s_branch {done}")
        self.lab(noffn)
        self.poll_ready()
        self.lab(done)
        self.Q = []
        a("s_waitcnt vmcnt(0)")
        self.stamp(3)
        def row0():
            a(f"s_lshl_b32 s{S_WO2}, s{S_J}, 5")
            a(f"s_add_u32 s{S_WO2}, s{S_WO2}, 64")
        self.wo_setup(8, row0)
        self.wo_loads(8)
        self.warm_dispatch("wb", S_J, 4)
        a("s_waitcnt vmcnt(0) lgkmcnt(0)"); self.Q = []
        self.stamp(4)

    def build(self):
        a = self.a; p = self.p
        self.entry()
        self.warm_dispatch("wa", 3, 8)
        self.warm_begin("wa", 8)
        self.ln_qproj()
        a("s_cmp_ge_u32 s3, 4")
        a("s_cbranch_scc1 L_aux")
        Qs = list(self.Q)
        self.stream()
        self.warm_end("wa")
        self.warm_begin("wb", 4)
        self.stream_tail()
        self.stamp(5)
        a("s_barrier")
        self.stamp(6)
        self.project(4, lambda: a("s_lshl_b32 s59, s3, 6"))
        a("s_branch L_epi")
        self.lab("L_aux_epi")
        self.stamp(5)
        a("s_barrier")
        self.stamp(6)
        def db():
            a(f"s_lshl_b32 s59, s{S_J}, 7")
            a("s_add_u32 s59, s59, 256")
        self.project(8, db)
        self.lab("L_epi")
        self.epi_common()
        self.warm_end("wb")
        self.lab("L_fin")
        if p['dbg']:
            a("s_memrealtime s[94:95]")
            a("s_waitcnt lgkmcnt(0)")
            a("s_lshl_b32 s59, s2, 3")
            a("s_add_u32 s59, s59, s3")
            a("s_lshl_b32 s59, s59, 7")
            a("s_add_u32 s59, s59, 0x100000")
            a("v_mov_b32 v9, 0")
            a("s_mov_b64 exec, 1")
            for i in range(11):
                a(f"v_mov_b32 v16, s{74+2*i}"); a(f"v_mov_b32 v17, s{75+2*i}")
                a(f"buffer_store_dwordx2 v[16:17], v9, {self.S(SRD_WS)}, s59 offen offset:{8*i}")
                a("s_nop 1")
        a("s_endpgm")
        self.lab("L_aux")
        self.Q = list(Qs)
        self.aux()
        a("s_branch L_aux_epi")
        self.lab("L_end")
        a("s_endpgm")
        lines, n = fix(self.L)
        info = {}
        if p['warm']:
            lines, info = insert_pads(lines, p['spacing'])
            lines, n2 = fix(lines)
            n += n2
        return lines, n, info

HEADER = open("cdna_kernels/" + NAME + ".s.ref").read().split("; Override launch")[0]

def emit(path, **kw):
    g = G(**kw)
    lines, n, info = g.build()
    txt = HEADER
    txt += "; Override launch geometry by editing the next line (default: block=256,\n"
    txt += f"; @launch grid=(256,1,1) block=(512,1,1) lds={LDS_BYTES}\n"
    txt += '.amdgcn_target "amdgcn-amd-amdhsa--gfx950"\n.text\n'
    txt += f".globl {NAME}_kernel\n.p2align 8\n.type {NAME}_kernel,@function\n{NAME}_kernel:\n"
    txt += "\n".join(lines) + "\n"
    txt += f""".section .rodata,"a"
.p2align 6
.amdhsa_kernel {NAME}_kernel
  .amdhsa_next_free_vgpr 256
  .amdhsa_next_free_sgpr 102
  .amdhsa_accum_offset 256
  .amdhsa_group_segment_fixed_size 0
  .amdhsa_kernarg_size 104
  .amdhsa_user_sgpr_count 2
  .amdhsa_user_sgpr_kernarg_segment_ptr 1
  .amdhsa_system_sgpr_workgroup_id_x 1
.end_amdhsa_kernel
"""
    open(path, "w").write(txt)
    print(path, "lines", len(lines), "nops inserted", n, "pads", info)

if __name__ == "__main__":
    kw = {}
    out = sys.argv[1]
    for x in sys.argv[2:]:
        k, v = x.split("=")
        kw[k] = int(v) if v.lstrip("-").isdigit() else v.replace("+", " ")
    emit(out, **kw)
```
